```python
import torch

def _softmax(x, axis=-1):
    return torch.softmax(x, dim=axis)

def _gelu(x):
    return torch.nn.functional.gelu(x, approximate='tanh')

def _silu(x):
    return torch.nn.functional.silu(x)

def _sigmoid(x):
    return torch.sigmoid(x)

def _layernorm(x, axis=-1, eps=1e-05):
    m = x.mean(dim=axis, keepdim=True)
    v = x.var(dim=axis, keepdim=True, unbiased=False)
    return (x - m) / torch.sqrt(v + eps)

def _scatter_add(tgt, idx, src, axis=0):
    return tgt.clone().index_add_(axis, idx, src)

def _segment_sum(src, seg, n):
    out = torch.zeros((n,) + src.shape[1:], dtype=src.dtype)
    return out.index_add_(0, seg, src)

def _pad(x, pw):
    flat = tuple((v for pair in reversed(pw) for v in pair))
    return torch.nn.functional.pad(x, flat)
kernel_name = 'adaLN_cond__softmax_full_mha__glu_gated_geglu__prompt'

def setup_inputs():

    _w = lambda a: (lambda t: t.to(torch.bfloat16) if t.is_floating_point() else t)(torch.as_tensor(a))

    def _A_setup():
        B, S, D = (1, 2048, 448)
        return {'x': _w((lambda *s: torch.randn(*s, dtype=torch.bfloat16) * 0.05)(B, S, D)), 'wqkv': _w((lambda *s: torch.randn(*s, dtype=torch.bfloat16) * 0.05)(D, 3 * D)), 'wo': _w((lambda *s: torch.randn(*s, dtype=torch.bfloat16) * 0.05)(D, D))}
    _A_in = _A_setup()

    def _B_setup():
        B, S, Dm, Df = (1, 2048, 448, 1792)
        return {'x': _w((lambda *s: torch.randn(*s, dtype=torch.bfloat16) * 0.05)(B, S, Dm)), 'w_gate': _w((lambda *s: torch.randn(*s, dtype=torch.bfloat16) * 0.8)(Dm, Df) * Dm ** (-0.5)), 'w_up': _w((lambda *s: torch.randn(*s, dtype=torch.bfloat16) * 0.8)(Dm, Df) * Dm ** (-0.5)), 'w_down': _w((lambda *s: torch.randn(*s, dtype=torch.bfloat16) * 0.8)(Df, Dm) * Df ** (-0.5))}
    _B_in = _B_setup()
    return {'A_x': _A_in['x'], 'A_wqkv': _A_in['wqkv'], 'A_wo': _A_in['wo'], 'B_x': _B_in['x'], 'B_w_gate': _B_in['w_gate'], 'B_w_up': _B_in['w_up'], 'B_w_down': _B_in['w_down'], 'c': _w((lambda *s: torch.randn(*s, dtype=torch.bfloat16) * 0.1)(1, 448) * 8.0), 'w_mod': _w((lambda *s: torch.randn(*s, dtype=torch.bfloat16) * 0.1)(448, 6 * 448) * 448 ** (-0.5) * 8.0)}

def reference(A_x, A_wqkv, A_wo, B_x, B_w_gate, B_w_up, B_w_down, c, w_mod):

    def _A_ref(x, wqkv, wo):
        B, S, D = x.shape
        H = 16
        Dh = D // H
        qkv = (lambda x, *d: x.permute(*d))((x @ wqkv).reshape(B, S, 3, H, Dh), 2, 0, 3, 1, 4)
        q, k, v = (qkv[0], qkv[1], qkv[2])
        scale = Dh ** (-0.5)
        scores = torch.einsum('bhqd,bhkd->bhqk', q, k) * scale
        p = _softmax(scores, axis=-1)
        o = torch.einsum('bhqk,bhkd->bhqd', p, v)
        return (lambda x, *d: x.permute(*d))(o, 0, 2, 1, 3).reshape(B, S, D) @ wo

    def _B_ref(x, w_gate, w_up, w_down):
        g = torch.einsum('bsd,df->bsf', x, w_gate)
        u = torch.einsum('bsd,df->bsf', x, w_up)
        h = _gelu(g) * u
        return torch.einsum('bsf,fd->bsd', h, w_down)
    x = A_x
    mod = (_silu(c) @ w_mod).reshape(c.shape[0], 6, 1, -1)
    sa, ca, ga, sb, cb, gb = (mod[:, 0].clone(), mod[:, 1].clone(), mod[:, 2].clone(), mod[:, 3].clone(), mod[:, 4].clone(), mod[:, 5].clone())
    h = _layernorm(x, axis=-1) * (1 + ca) + sa
    x = x + ga * _A_ref(h, A_wqkv, A_wo)
    h = _layernorm(x, axis=-1) * (1 + cb) + sb
    x = x + gb * _B_ref(h, B_w_gate, B_w_up, B_w_down)
    return x
```

```python
import re

class Asm:
    def __init__(self):
        self.lines = []
    def __call__(self, s=""):
        for l in s.split("\n"):
            l = l.strip()
            if l: self.lines.append("  " + l)
    def label(self, name): self.lines.append(name + ":")
    def raw(self, s): self.lines.append(s)
    def comment(self, s): self.lines.append("  ; " + s)
    def nop(self, n):
        while n > 0:
            k = min(n, 16)
            self("s_nop %d" % (k - 1)); n -= k
    def text(self): return "\n".join(self.lines) + "\n"

def vr(b, n=1): return f"v{b}" if n == 1 else f"v[{b}:{b+n-1}]"
def ar(b, n=1): return f"a{b}" if n == 1 else f"a[{b}:{b+n-1}]"
def sr(b, n=1): return f"s{b}" if n == 1 else f"s[{b}:{b+n-1}]"
def R(b, n=1):
    return ar(b - 256, n) if b >= 256 else vr(b, n)

_REG = re.compile(r"\b([vas])(?:(\d+)|\[(\d+):(\d+)\])")
def regs_of(tok):
    out = set()
    for m in _REG.finditer(tok):
        k = m.group(1)
        if m.group(2) is not None: out.add((k, int(m.group(2))))
        else:
            for i in range(int(m.group(3)), int(m.group(4)) + 1): out.add((k, i))
    if re.search(r"\bvcc\b", tok): out |= {("s", "vcc")}
    if re.search(r"\bexec\b", tok): out |= {("s", "exec")}
    if re.search(r"\bm0\b", tok): out |= {("s", "m0")}
    return out

TRANS = ("v_exp_f32", "v_log_f32", "v_rcp_f32", "v_rsq_f32", "v_sqrt_f32", "v_sin_f32", "v_cos_f32", "v_rcp_iflag_f32", "v_exp_f16")
class Ins:
    def __init__(self, text):
        self.text = text
        t = text.split(";")[0].strip()
        self.op = t.split()[0]
        rest = t[len(self.op):].strip()
        ops = [o.strip() for o in re.split(r",(?![^\[]*\])", rest)] if rest else []
        self.ops = ops
        op = self.op
        self.is_mfma = op.startswith("v_mfma")
        self.is_valu = op.startswith("v_") and not self.is_mfma
        self.is_trans = any(op.startswith(x) for x in TRANS)
        self.is_vmem = op.startswith(("buffer_", "global_", "flat_"))
        self.is_ds = op.startswith("ds_")
        self.is_salu = op.startswith("s_")
        self.is_dpp = ("dpp" in op) or ("row_" in t) or ("quad_perm" in t) or ("wave_" in t)
        self.is_permlane = op.startswith("v_permlane")
        self.is_store = (self.is_vmem and ("store" in op or "atomic" in op))
        self.is_lds_dma = self.is_vmem and re.search(r"\blds\b", t) is not None
        d, s = set(), set()
        if op.startswith("v_cmp"):
            d |= regs_of(ops[0]);
            for o in ops[1:]: s |= regs_of(o)
            if op.startswith("v_cmpx"): d |= {("s", "exec")}
        elif op.startswith(("v_readfirstlane", "v_readlane")):
            d |= regs_of(ops[0])
            for o in ops[1:]: s |= regs_of(o)
        elif self.is_permlane and "swap" in op:
            d |= regs_of(ops[0]) | regs_of(ops[1]); s |= d
        elif self.is_mfma or self.is_valu:
            d |= regs_of(ops[0])
            k = 1
            if op.startswith(("v_add_co", "v_sub_co", "v_addc_co", "v_subb_co", "v_subrev_co", "v_mad_u64", "v_div_scale")):
                d |= regs_of(ops[1]); k = 2
            for o in ops[k:]: s |= regs_of(o)
            if op.startswith(("v_fmac", "v_dot2c", "v_pk_fmac", "v_writelane")) or self.is_dpp: s |= regs_of(ops[0])
            if op.startswith("v_cndmask") and len(ops) == 3: s |= {("s", "vcc")}
        elif self.is_vmem:
            if self.is_store or self.is_lds_dma:
                for o in ops: s |= regs_of(o)
                if self.is_lds_dma: s |= {("s", "m0")}
                if "atomic" in op and re.search(r"\bsc0\b", t): d |= regs_of(ops[0])
            else:
                d |= regs_of(ops[0])
                for o in ops[1:]: s |= regs_of(o)
        elif self.is_ds:
            if op.startswith(("ds_read", "ds_bpermute", "ds_permute", "ds_swizzle")):
                d |= regs_of(ops[0])
                for o in ops[1:]: s |= regs_of(o)
            else:
                for o in ops: s |= regs_of(o)
        elif self.is_salu:
            if op.startswith(("s_cmp", "s_waitcnt", "s_nop", "s_barrier", "s_branch", "s_cbranch", "s_endpgm", "s_setprio", "s_sleep", "s_bitcmp")):
                for o in ops: s |= regs_of(o)
            else:
                if ops: d |= regs_of(ops[0])
                for o in ops[1:]: s |= regs_of(o)
                if "saveexec" in op: d |= {("s", "exec")}; s |= {("s", "exec")}
        self.d, self.s = d, s
        self.ws = 1
        if op == "s_nop": self.ws = int(ops[0], 0) + 1
        if self.is_mfma:
            self.passes = 8 if "32x32" in op else 4
            self.srcC = regs_of(ops[3]) if len(ops) > 3 else set()
            self.srcAB = regs_of(ops[1]) | regs_of(ops[2])

def check_hazards(lines, verbose=True):
    ins = []
    for l in lines:
        t = l.split(";")[0].strip()
        if not t or t.endswith(":") or t.startswith("."): continue
        ins.append(Ins(t))
    probs = []
    W = 24
    for i, c in enumerate(ins):
        dist = 0
        for j in range(i - 1, max(-1, i - W - 1), -1):
            p = ins[j]
            need = 0; why = ""
            vd = {r for r in p.d if r[0] in "va"}
            sd = {r for r in p.d if r[0] == "s"}
            if p.op in ("s_branch", "s_endpgm", "s_setpc_b64"): break
            if p.is_valu and c.is_mfma and (vd & c.s): need, why = 2, "VALU->MFMA"
            if p.is_mfma:
                n = p.passes
                if c.is_mfma:
                    if vd & c.srcAB: need, why = (12 if n == 8 else 8), "MFMA D->MFMA A/B"
                    elif vd & c.srcC and not (vd == c.srcC and c.passes == n): need, why = (10 if n == 8 else 6), "MFMA D->partial C"
                elif (c.is_valu and (vd & (c.s | c.d))) or ((c.is_vmem or c.is_ds) and (vd & (c.s | c.d))):
                    need, why = (12 if n == 8 else 8), "MFMA D->VALU/VMEM/DS"
                if c.is_valu and (p.srcC & c.d) and need == 0: need, why = (7 if n == 8 else 3), "MFMA srcC WAR"
            if p.is_valu:
                if c.is_vmem and (sd & c.s): need, why = max(need, 5), "VALU sgpr->VMEM"
                if c.is_valu and (sd & c.s) and not c.op.startswith(("v_readlane", "v_writelane")):
                    need, why = max(need, 2), "VALU sgpr->VALU const"
                if c.op.startswith(("v_readlane", "v_readfirstlane")) and (vd & c.s): need, why = max(need, 1), "VALU->readlane"
                if c.op.startswith(("v_readlane", "v_writelane")) and (sd & c.s): need, why = max(need, 4), "VALU sgpr->lane select"
                if c.is_dpp and c.is_valu and (vd & c.s): need, why = max(need, 2), "VALU->DPP"
                if c.is_permlane and (vd & c.s): need, why = max(need, 2), "VALU->permlane"
                if p.is_trans and c.is_valu and not c.is_trans and (vd & c.s): need, why = max(need, 1), "trans->VALU"
                if p.is_trans and (c.is_mfma) and (vd & c.s): need, why = max(need, 2), "trans->MFMA"
                if ("s", "exec") in sd and c.is_dpp: need, why = max(need, 5), "VALU exec->DPP"
                if ("s", "exec") in sd and c.is_mfma: need, why = max(need, 4), "VALU exec->MFMA"
                if ("sdwa" in p.op or "op_sel" in p.text) and c.is_valu and (vd & c.s): need, why = max(need, 1), "sdwa/opsel->VALU"
            if p.is_salu and ("s", "m0") in p.d and c.is_lds_dma: need, why = max(need, 1), "M0->LDS DMA"
            if p.is_store and p.is_vmem and re.search(r"x[34]", p.op):
                data = regs_of(p.ops[0]) if p.op.startswith("buffer") else regs_of(p.ops[1])
                if c.is_valu and (data & c.d): need, why = max(need, 2), "store data WAR"
                elif (data & c.d) and not c.is_salu: need, why = max(need, 1), "store data WAR"
            if need > dist:
                probs.append(f"{why}: need {need} have {dist}: [{p.text}] -> [{c.text}]")
            dist += p.ws
            if dist >= 20: break
    if verbose:
        for p in probs[:40]: print("HAZARD", p)
        if len(probs) > 40: print("...", len(probs), "total")
    return probs
```

```python
from asmlib import *
import math, sys

NAME = "adaLN_cond__softmax_full_mha__glu_gated_geglu__prompt"
OFF_MOD   = 0x0000000
OFF_STATS = 0x0010000
OFF_CSB   = 0x0050000
OFF_FLAGS = 0x0060000
OFF_WQKV  = 0x0100000
OFF_WO    = 0x0250000
OFF_WD    = 0x02C0000
OFF_WGU   = 0x0450000
OFF_KV    = 0x0760000
OFF_Q     = 0x0B60000
OFF_O     = 0x0D60000
OFF_X1    = 0x0F60000
OFF_ACT   = 0x1120000
WS_USED   = 0x1820000
OOB = 0x7ffffff0

sX, sWQKV, sWO, sBX, sWG, sWU, sWD, sC, sWMOD, sOUT, sDBG, sWS = 4, 6, 8, 10, 12, 14, 16, 18, 20, 22, 24, 26
SRD_WS, SRD_A, SRD_B, SRD_C = 28, 32, 36, 40
LOG2E = 1.4426950408889634

def f2u(x):
    import struct
    return "0x%08x" % struct.unpack("<I", struct.pack("<f", x))[0]

def srd(a, q, ptr, size):
    a(f"s_mov_b32 s{q}, s{ptr}")
    a(f"s_and_b32 s{q+1}, s{ptr+1}, 0xffff")
    a(f"s_mov_b32 s{q+2}, {size}")
    a(f"s_mov_b32 s{q+3}, 0x20000")

def prologue(a, name, nwg):
    a.raw(f".globl {name}")
    a.raw(".p2align 8")
    a.raw(f".type {name},@function")
    a.label(name)
    a(f"s_cmp_ge_u32 s2, {nwg}")
    a(f"s_cbranch_scc1 {name}_end")
    a("s_load_dwordx16 s[4:19], s[0:1], 0")
    a("s_load_dwordx8 s[20:27], s[0:1], 64")
    a("v_and_b32 v1, 63, v0")
    a("v_lshrrev_b32 v2, 6, v0")
    a("s_nop 0")
    a("v_readfirstlane_b32 s3, v2")
    a("s_waitcnt lgkmcnt(0)")
    srd(a, SRD_WS, sWS, WS_USED)

def epilogue(a, name):
    a.label(f"{name}_end")
    a("s_endpgm")

def descriptor(name, lds_static=0):
    return f""".amdhsa_kernel {name}
  .amdhsa_next_free_vgpr 512
  .amdhsa_next_free_sgpr 102
  .amdhsa_accum_offset 256
  .amdhsa_group_segment_fixed_size 0
  .amdhsa_kernarg_size 96
  .amdhsa_user_sgpr_count 2
  .amdhsa_user_sgpr_kernarg_segment_ptr 1
  .amdhsa_system_sgpr_workgroup_id_x 1
  .amdhsa_float_denorm_mode_32 3
.end_amdhsa_kernel
"""

def bf16_round_f32(a, dst, src, tmp=None):
    a(f"v_cvt_pk_bf16_f32 v{dst}, v{src}, v{src}")
    a(f"v_lshlrev_b32 v{dst}, 16, v{dst}")

def unpack_lo(a, dst, src): a(f"v_lshlrev_b32 v{dst}, 16, v{src}")
def unpack_hi(a, dst, src): a(f"v_and_b32 v{dst}, 0xffff0000, v{src}")

def job_mod(a, tag):
    a("s_cmp_ge_u32 s2, 168")
    a(f"s_cbranch_scc1 {tag}_skipmod")
    srd(a, SRD_A, sWMOD, 448*5376)
    srd(a, SRD_B, sC, 896)
    a("v_and_b32 v3, 31, v1")
    a("v_lshrrev_b32 v4, 5, v1")
    a("v_lshl_add_u32 v5, v2, 5, v3")
    a("v_mul_u32_u24 v6, 0x1500, v5")
    a("s_lshl_b32 s44, s2, 5")
    a("v_lshlrev_b32 v7, 4, v4")
    a("v_add3_u32 v6, v6, v7, s44")
    a("v_lshlrev_b32 v7, 1, v5")
    for i in range(4):
        a(f"v_add_u32 v{8+i}, {i*128*5376}, v6")
        a(f"v_add_u32 v{12+i}, {i*256}, v7")
    for i in range(4):
        a(f"buffer_load_ushort v{16+i}, v{12+i}, s[{SRD_B}:{SRD_B+3}], 0 offen")
    for i in range(4):
        a(f"buffer_load_dwordx4 v[{20+4*i}:{23+4*i}], v{8+i}, s[{SRD_A}:{SRD_A+3}], 0 offen")
    a("s_waitcnt vmcnt(4)")
    for i in range(4):
        a(f"v_lshlrev_b32 v{16+i}, 16, v{16+i}")
        a(f"v_mul_f32 v{12+i}, {f2u(-LOG2E)}, v{16+i}")
    for i in range(4): a(f"v_exp_f32 v{12+i}, v{12+i}")
    for i in range(4): a(f"v_add_f32 v{12+i}, 1.0, v{12+i}")
    for i in range(4): a(f"v_rcp_f32 v{12+i}, v{12+i}")
    a("s_nop 0")
    for i in range(4): a(f"v_mul_f32 v{16+i}, v{16+i}, v{12+i}")
    for i in range(4): bf16_round_f32(a, 16+i, 16+i)
    for c in range(8): a(f"v_mov_b32 v{40+c}, 0")
    for i in range(4):
        a(f"s_waitcnt vmcnt({3-i})")
        for d in range(4):
            unpack_lo(a, 48, 20+4*i+d); unpack_hi(a, 49, 20+4*i+d)
            a(f"v_fmac_f32 v{40+2*d}, v48, v{16+i}")
            a(f"v_fmac_f32 v{41+2*d}, v49, v{16+i}")
    for sh in ("row_shr:1", "row_shr:2", "row_shr:4", "row_shr:8"):
        a("s_nop 1")
        for c in range(8):
            a(f"v_add_f32_dpp v{40+c}, v{40+c}, v{40+c} {sh} row_mask:0xf bank_mask:0xf bound_ctrl:0")
    a("s_nop 1")
    for c in range(8):
        a(f"v_add_f32_dpp v{40+c}, v{40+c}, v{40+c} row_bcast:15 row_mask:0xa bank_mask:0xf")
    a("v_lshlrev_b32 v50, 6, v2")
    a("v_lshl_add_u32 v50, v4, 5, v50")
    a("v_cmp_eq_u32 vcc, 31, v3")
    a("s_and_saveexec_b64 s[46:47], vcc")
    a("ds_write_b128 v50, v[40:43]")
    a("ds_write_b128 v50, v[44:47] offset:16")
    a("s_mov_b64 exec, s[46:47]")
    a("s_waitcnt lgkmcnt(0)")
    a("s_barrier")
    a("v_lshlrev_b32 v51, 2, v0")
    a("v_and_b32 v51, 63, v51")
    for wv in range(4): a(f"ds_read_b32 v{52+wv}, v51 offset:{wv*64}")
    a("s_waitcnt lgkmcnt(0)")
    a("v_add_f32 v52, v52, v53")
    a("v_add_f32 v54, v54, v55")
    a("v_add_f32 v52, v52, v54")
    bf16_round_f32(a, 52, 52)
    a("s_lshl_b32 s44, s2, 6")
    a("v_lshlrev_b32 v53, 2, v0")
    a("v_add_u32 v53, s44, v53")
    a(f"v_mov_b32 v54, {OOB}")
    a("v_cmp_gt_u32 vcc, 16, v0")
    a("s_nop 1")
    a("v_cndmask_b32 v53, v54, v53, vcc")
    a(f"buffer_store_dword v52, v53, s[{SRD_WS}:{SRD_WS+3}], 0 offen offset:{OFF_MOD}")
    a("s_barrier")
    a.label(f"{tag}_skipmod")

def transpose_8x4(a, src, dst, selLo, selHi):
    for c in range(4):
        for p in range(4):
            s1 = src + 2*(2*p) + (c >> 1); s0 = src + 2*(2*p+1) + (c >> 1)
            a(f"v_perm_b32 v{dst+4*c+p}, v{s0}, v{s1}, s{selHi if c & 1 else selLo}")
def transpose_8x8(a, src, dst, selLo, selHi):
    for c in range(8):
        for p in range(4):
            s1 = src + 4*(2*p) + (c >> 1); s0 = src + 4*(2*p+1) + (c >> 1)
            a(f"v_perm_b32 v{dst+4*c+p}, v{s0}, v{s1}, s{selHi if c & 1 else selLo}")

def job_wqkv(a, tag):
    a("s_cmp_ge_u32 s2, 224")
    a(f"s_cbranch_scc1 {tag}_skipj2")
    srd(a, SRD_A, sWQKV, 448*2688)
    a("s_mul_hi_u32 s44, s2, 0x12492493")
    a("s_mul_i32 s45, s44, 14")
    a("s_sub_u32 s45, s2, s45")
    a("s_mov_b32 s46, 0x05040100")
    a("s_mov_b32 s47, 0x07060302")
    a("v_lshrrev_b32 v3, 5, v0")
    a("v_bfe_u32 v4, v0, 3, 2")
    a("v_and_b32 v5, 7, v0")
    a("s_mul_i32 s48, s45, %d" % (32*2688))
    a("s_mul_i32 s49, s44, 56")
    a("s_add_u32 s48, s48, s49")
    a("v_mul_u32_u24 v6, %d, v4" % (8*2688))
    a("v_mul_u32_u24 v7, 896, v3")
    a("v_add3_u32 v6, v6, v7, s48")
    a("v_lshl_add_u32 v6, v5, 3, v6")
    a(f"v_mov_b32 v8, {OOB}")
    a("v_cmp_gt_u32 vcc, 96, v0")
    a("v_cmp_ne_u32 s[50:51], 7, v5")
    a("s_and_b64 vcc, vcc, s[50:51]")
    a("s_nop 1")
    a("v_cndmask_b32 v6, v8, v6, vcc")
    for i in range(8):
        if i == 0: a(f"buffer_load_dwordx2 v[16:17], v6, s[{SRD_A}:{SRD_A+3}], 0 offen")
        else:
            a(f"v_add_u32 v{9}, {i*2688}, v6")
            a(f"buffer_load_dwordx2 v[{16+2*i}:{17+2*i}], v9, s[{SRD_A}:{SRD_A+3}], 0 offen")
    a("s_mul_i32 s48, s44, 86016")
    a("s_mul_i32 s49, s45, 6144")
    a("s_add_u32 s48, s48, s49")
    a(f"s_add_u32 s48, s48, {OFF_WQKV}")
    a("v_lshrrev_b32 v10, 1, v4")
    a("v_mul_u32_u24 v10, 3, v10")
    a("v_add_u32 v10, v10, v3")
    a("v_lshlrev_b32 v10, 10, v10")
    a("v_and_b32 v11, 1, v4")
    a("v_lshl_add_u32 v10, v11, 9, v10")
    a("v_lshl_add_u32 v10, v5, 6, v10")
    a("v_add_u32 v10, s48, v10")
    a("v_cmp_gt_u32 vcc, 96, v0")
    a("s_nop 1")
    a("v_cndmask_b32 v10, v8, v10, vcc")
    a("s_waitcnt vmcnt(0)")
    transpose_8x4(a, 16, 32, 46, 47)
    for c in range(4):
        a(f"buffer_store_dwordx4 v[{32+4*c}:{35+4*c}], v10, s[{SRD_WS}:{SRD_WS+3}], 0 offen offset:{16*c}")
    a.label(f"{tag}_skipj2")

def job_wod(a, tag):
    srd(a, SRD_A, sWD, 1792*896)
    srd(a, SRD_B, sWO, 448*896)
    a("s_mov_b32 s46, 0x05040100")
    a("s_mov_b32 s47, 0x07060302")
    a("s_lshl_b32 s44, s2, 6")
    a("v_add_u32 v3, s44, v1")
    a("s_cmp_lg_u32 s3, 0")
    a(f"s_cbranch_scc1 {tag}_skipj3")
    a("v_mov_b32 v20, 12544")
    a("v_cmp_gt_u32 s[50:51], v20, v3")
    a("v_subrev_u32 v4, 12544, v3")
    a("s_nop 0")
    a("v_cndmask_b32 v4, v4, v3, s[50:51]")
    a("s_mov_b32 s48, 0x4924925")
    a("v_mul_hi_u32 v5, v4, s48")
    a("v_mul_u32_u24 v6, 56, v5")
    a("v_sub_u32 v6, v4, v6")
    a("v_lshrrev_b32 v7, 1, v5")
    a("v_and_b32 v8, 1, v5")
    a("v_lshlrev_b32 v9, 4, v7")
    a("v_lshl_add_u32 v9, v8, 2, v9")
    a("v_lshrrev_b32 v10, 1, v7")
    a("v_mul_u32_u24 v10, 28, v10")
    a("v_and_b32 v11, 1, v7")
    a("v_lshlrev_b32 v11, 4, v11")
    a("v_lshl_add_u32 v11, v8, 2, v11")
    a(f"v_mov_b32 v21, {OOB}")
    a("v_mov_b32 v22, 3584")
    a("v_cmp_gt_u32 s[52:53], v22, v4")
    a("s_or_b64 s[52:53], s[52:53], s[50:51]")
    for j in range(8):
        off = (j & 3) + 8 * (j >> 2)
        a(f"v_add_u32 v12, {off}, v9")
        a("v_mul_u32_u24 v12, 896, v12")
        a("v_lshl_add_u32 v12, v6, 4, v12")
        a("v_cndmask_b32 v12, v21, v12, s[50:51]")
        a(f"buffer_load_dwordx4 v[{32+4*j}:{35+4*j}], v12, s[{SRD_A}:{SRD_A+3}], 0 offen")
        a(f"v_add_u32 v13, {off}, v11")
        a("v_cmp_gt_u32 vcc, 28, v13")
        a("v_add_u32 v13, v13, v10")
        a("v_mul_u32_u24 v13, 896, v13")
        a("v_lshl_add_u32 v13, v6, 4, v13")
        a("v_cndmask_b32 v13, v21, v13, vcc")
        a("v_cndmask_b32 v13, v13, v21, s[50:51]")
        a("v_cndmask_b32 v13, v21, v13, s[52:53]")
        a(f"buffer_load_dwordx4 v[{64+4*j}:{67+4*j}], v13, s[{SRD_B}:{SRD_B+3}], 0 offen")
    a("v_lshrrev_b32 v14, 2, v6")
    a("v_mul_u32_u24 v15, 112, v14")
    a("v_add_u32 v15, v15, v7")
    a("v_lshlrev_b32 v15, 10, v15")
    a(f"v_add_u32 v15, {OFF_WD}, v15")
    a("v_lshl_add_u32 v16, v14, 5, v7")
    a("v_lshlrev_b32 v16, 10, v16")
    a(f"v_add_u32 v16, {OFF_WO}, v16")
    a("v_cndmask_b32 v15, v16, v15, s[50:51]")
    a("v_and_b32 v16, 3, v6")
    a("v_lshlrev_b32 v16, 7, v16")
    a("v_lshl_add_u32 v16, v8, 9, v16")
    a("v_add_u32 v15, v15, v16")
    a("v_cndmask_b32 v15, v21, v15, s[52:53]")
    a("s_waitcnt vmcnt(0)")
    for r in range(32): a(f"v_or_b32 v{32+r}, v{32+r}, v{64+r}")
    transpose_8x8(a, 32, 96, 46, 47)
    for c in range(8):
        a(f"buffer_store_dwordx4 v[{96+4*c}:{99+4*c}], v15, s[{SRD_WS}:{SRD_WS+3}], 0 offen offset:{16*c}")
    a.label(f"{tag}_skipj3")

def k_prep():
    a = Asm(); n = "prep_kernel"
    prologue(a, n, 256)
    job_mod(a, n)
    job_wqkv(a, n)
    job_wod(a, n)
    epilogue(a, n)
    return n, a, 256, 256, 1024

def job_wgu(a, tag):
    a("s_cmp_ge_u32 s2, 224")
    a(f"s_cbranch_scc1 {tag}_skipj4")
    a("s_lshr_b32 s44, s2, 1")
    a("s_and_b32 s45, s2, 1")
    a("s_cmp_eq_u32 s45, 0")
    a(f"s_cselect_b32 s48, s{sWG}, s{sWU}")
    a(f"s_cselect_b32 s49, s{sWG+1}, s{sWU+1}")
    srd(a, SRD_A, 48, 448*3584)
    a("s_mov_b32 s46, 0x05040100")
    a("v_and_b32 v3, 1, v0")
    a("v_lshrrev_b32 v4, 1, v0")
    a("v_lshrrev_b32 v5, 1, v4")
    a("v_and_b32 v6, 1, v4")
    a("v_lshlrev_b32 v7, 4, v5")
    a("v_lshl_add_u32 v7, v6, 2, v7")
    a(f"v_mov_b32 v8, {OOB}")
    a("v_mov_b32 v20, 112")
    a("v_cmp_gt_u32 s[50:51], v20, v0")
    a("s_lshl_b32 s52, s44, 5")
    a("v_lshlrev_b32 v9, 4, v3")
    a("v_add_u32 v9, s52, v9")
    for j in range(8):
        off = (j & 3) + 8 * (j >> 2)
        a(f"v_add_u32 v10, {off}, v7")
        a("v_mul_u32_u24 v11, 3584, v10")
        a("v_add_u32 v11, v11, v9")
        a("v_cndmask_b32 v11, v8, v11, s[50:51]")
        a(f"buffer_load_dwordx4 v[{32+4*j}:{35+4*j}], v11, s[{SRD_A}:{SRD_A+3}], 0 offen")
        a("v_lshlrev_b32 v10, 2, v10")
        a("v_cndmask_b32 v10, v8, v10, s[50:51]")
        a(f"buffer_load_dword v{16+j}, v10, s[{SRD_WS}:{SRD_WS+3}], 0 offen offset:{OFF_MOD}")
    a(f"s_mov_b32 s53, {OFF_MOD + 4*448*4}")
    a(f"s_mov_b32 s54, {OFF_MOD + 3*448*4}")
    a("s_waitcnt vmcnt(0)")
    for j in range(8):
        off = (j & 3) + 8 * (j >> 2)
        a(f"v_add_u32 v10, {off}, v7")
        a("v_lshlrev_b32 v10, 2, v10")
        a("v_cndmask_b32 v10, v8, v10, s[50:51]")
        a(f"buffer_load_dword v{16+j}, v10, s[{SRD_WS}:{SRD_WS+3}], s53 offen")
        a(f"buffer_load_dword v{24+j}, v10, s[{SRD_WS}:{SRD_WS+3}], s54 offen")
    a("s_waitcnt vmcnt(0)")
    for j in range(8):
        a(f"v_add_f32 v{16+j}, 1.0, v{16+j}")
    for j in range(8):
        bf16_round_f32(a, 16+j, 16+j)
    for c in range(16): a(f"v_mov_b32 v{64+c}, 0")
    for j in range(8):
        for d in range(4):
            unpack_lo(a, 80, 32+4*j+d); unpack_hi(a, 81, 32+4*j+d)
            a(f"v_fmac_f32 v{72+2*d}, v80, v{24+j}")
            a(f"v_fmac_f32 v{73+2*d}, v81, v{24+j}")
            a(f"v_mul_f32 v{128+8*j+2*d}, v80, v{16+j}")
            a(f"v_mul_f32 v{129+8*j+2*d}, v81, v{16+j}")
    for c in range(8):
        for p in range(4):
            a(f"v_cvt_pk_bf16_f32 v{96+4*c+p}, v{128+8*(2*p)+c}, v{128+8*(2*p+1)+c}")
    for c in range(8):
        for p in range(4):
            unpack_lo(a, 80, 96+4*c+p); unpack_hi(a, 81, 96+4*c+p)
            a(f"v_add_f32 v{64+c}, v{64+c}, v80")
            a(f"v_add_f32 v{64+c}, v{64+c}, v81")
    a("s_mul_i32 s52, s44, 28672")
    a("s_lshl_b32 s55, s45, 8")
    a("s_add_u32 s52, s52, s55")
    a(f"s_add_u32 s52, s52, {OFF_WGU}")
    a("v_lshlrev_b32 v12, 10, v5")
    a("v_lshl_add_u32 v12, v6, 9, v12")
    a("v_lshl_add_u32 v12, v3, 7, v12")
    a("v_add_u32 v12, s52, v12")
    a("v_cndmask_b32 v12, v8, v12, s[50:51]")
    for c in range(8):
        a(f"buffer_store_dwordx4 v[{96+4*c}:{99+4*c}], v12, s[{SRD_WS}:{SRD_WS+3}], 0 offen offset:{16*c}")
    a("v_lshlrev_b32 v13, 6, v0")
    for q in range(4): a(f"ds_write_b128 v13, v[{64+4*q}:{67+4*q}] offset:{16*q}")
    a("s_waitcnt lgkmcnt(0)")
    a("s_barrier")
    a("v_bfe_u32 v14, v0, 3, 1")
    a("v_lshlrev_b32 v14, 6, v14")
    a("v_bfe_u32 v15, v0, 4, 1")
    a("v_lshl_add_u32 v14, v15, 5, v14")
    a("v_and_b32 v15, 7, v0")
    a("v_lshl_add_u32 v14, v15, 2, v14")
    a("v_mov_b32 v80, 0")
    for g in range(7):
        for i in range(8): a(f"ds_read_b32 v{32+i}, v14 offset:{(g*8+i)*128}")
        a("s_waitcnt lgkmcnt(0)")
        for i in range(8): a(f"v_add_f32 v80, v80, v{32+i}")
    a("s_lshl_b32 s52, s44, 8")
    a("s_lshl_b32 s55, s45, 6")
    a("s_add_u32 s52, s52, s55")
    a(f"s_add_u32 s52, s52, {OFF_CSB}")
    a("v_bfe_u32 v15, v0, 4, 1")
    a("v_lshlrev_b32 v15, 7, v15")
    a("v_and_b32 v16, 15, v0")
    a("v_lshl_add_u32 v15, v16, 2, v15")
    a("v_add_u32 v15, s52, v15")
    a("v_cmp_gt_u32 vcc, 32, v0")
    a("s_nop 1")
    a("v_cndmask_b32 v15, v8, v15, vcc")
    a(f"buffer_store_dword v80, v15, s[{SRD_WS}:{SRD_WS+3}], 0 offen")
    a.label(f"{tag}_skipj4")

def k_fold():
    a = Asm(); n = "fold_kernel"
    prologue(a, n, 224)
    job_wgu(a, n)
    epilogue(a, n)
    return n, a, 224, 256, 16384

def map_mb_h(a, s_mb, s_h):
    a("s_and_b32 s44, s2, 7")
    a("s_lshr_b32 s45, s2, 3")
    a("s_lshr_b32 s46, s44, 1")
    a("s_lshl_b32 s46, s46, 2")
    a("s_and_b32 s47, s45, 3")
    a(f"s_add_u32 s{s_h}, s46, s47")
    a("s_and_b32 s46, s44, 1")
    a("s_lshl_b32 s46, s46, 3")
    a("s_lshr_b32 s47, s45, 2")
    a(f"s_add_u32 s{s_mb}, s46, s47")

QSCALE = 28 ** -0.5 * LOG2E
def k_qkv():
    a = Asm(); n = "qkv_kernel"
    prologue(a, n, 256)
    sMB, sH = 60, 61
    map_mb_h(a, sMB, sH)
    XF = 16
    LDS_COEF = 86016
    srd(a, SRD_A, sX, 2048*896)
    a("v_and_b32 v3, 31, v1")
    a("v_lshrrev_b32 v4, 5, v1")
    a(f"s_lshl_b32 s44, s{sMB}, 7")
    a("s_lshl_b32 s45, s3, 5")
    a("s_add_u32 s44, s44, s45")
    a("v_add_u32 v5, s44, v3")
    a("v_mul_u32_u24 v5, 896, v5")
    a("v_lshl_add_u32 v5, v4, 4, v5")
    for s in range(28):
        a(f"buffer_load_dwordx4 v[{XF+4*s}:{XF+4*s+3}], v5, s[{SRD_A}:{SRD_A+3}], 0 offen offset:{32*s}")
    a(f"s_mul_i32 s44, s{sH}, 86016")
    a(f"s_add_u32 s44, s44, {OFF_WQKV}")
    a("s_lshl_b32 s45, s3, 10")
    a("s_add_u32 s44, s44, s45")
    a("v_lshlrev_b32 v6, 4, v1")
    a("s_mov_b32 m0, s45")
    for i in range(21):
        a("s_nop 0")
        a(f"buffer_load_dwordx4 v6, s[{SRD_WS}:{SRD_WS+3}], s44 offen lds")
        a("s_add_u32 s44, s44, 4096")
        a("s_add_u32 m0, m0, 4096")
    a(f"s_mov_b32 s46, {OFF_MOD + 448*4}")
    a(f"s_mov_b32 s47, {OFF_MOD}")
    a(f"v_mov_b32 v8, {OOB}")
    a("v_lshlrev_b32 v7, 2, v0")
    a("v_add_u32 v9, 1024, v7")
    a("v_cmp_gt_u32 vcc, 192, v0")
    a("s_nop 1")
    a("v_cndmask_b32 v9, v8, v9, vcc")
    a(f"buffer_load_dword v10, v7, s[{SRD_WS}:{SRD_WS+3}], s46 offen")
    a(f"buffer_load_dword v11, v7, s[{SRD_WS}:{SRD_WS+3}], s47 offen")
    a(f"buffer_load_dword v12, v9, s[{SRD_WS}:{SRD_WS+3}], s46 offen")
    a(f"buffer_load_dword v13, v9, s[{SRD_WS}:{SRD_WS+3}], s47 offen")
    a("s_waitcnt vmcnt(0)")
    a("v_add_f32 v10, 1.0, v10")
    a("v_add_f32 v12, 1.0, v12")
    bf16_round_f32(a, 10, 10); bf16_round_f32(a, 12, 12)
    a("v_lshrrev_b32 v14, 3, v0")
    a("v_lshlrev_b32 v14, 6, v14")
    a("v_and_b32 v15, 7, v0")
    a("v_lshl_add_u32 v14, v15, 2, v14")
    a(f"v_add_u32 v14, {LDS_COEF}, v14")
    a("ds_write_b32 v14, v10")
    a("ds_write_b32 v14, v11 offset:32")
    a("v_cmp_gt_u32 vcc, 192, v0")
    a("s_and_saveexec_b64 s[46:47], vcc")
    a("ds_write_b32 v14, v12 offset:2048")
    a("ds_write_b32 v14, v13 offset:2080")
    a("s_mov_b64 exec, s[46:47]")
    a("v_mov_b32 v8, 0"); a("v_mov_b32 v9, 0")
    a("s_mov_b32 s46, 0x3f803f80")
    for r in range(112):
        unpack_lo(a, 10, XF+r); unpack_hi(a, 11, XF+r)
        a("v_add_f32 v8, v8, v10")
        a("v_fmac_f32 v9, v10, v10")
        a("v_add_f32 v8, v8, v11")
        a("v_fmac_f32 v9, v11, v11")
    a("v_mov_b32 v10, v8"); a("v_mov_b32 v11, v9")
    a("s_nop 1")
    a("v_permlane32_swap_b32 v8, v10")
    a("v_permlane32_swap_b32 v9, v11")
    a("s_nop 1")
    a("v_add_f32 v8, v8, v10")
    a("v_add_f32 v9, v9, v11")
    a(f"v_mul_f32 v8, {f2u(1/448)}, v8")
    a(f"v_mul_f32 v9, {f2u(1/448)}, v9")
    a("v_fma_f32 v9, -v8, v8, v9")
    a("v_max_f32 v9, 0, v9")
    a(f"v_add_f32 v9, {f2u(1e-5)}, v9")
    a("v_rsq_f32 v9, v9")
    a("s_nop 0")
    a("v_mul_f32 v8, v8, v9")
    a("v_sub_f32 v8, 0, v8")
    a("s_waitcnt lgkmcnt(0)")
    a("s_barrier")
    a("v_lshlrev_b32 v10, 6, v4")
    a(f"v_add_u32 v10, {LDS_COEF}, v10")
    CO = 128
    for s in range(28):
        for q in range(4): a(f"ds_read_b128 v[{CO+4*q}:{CO+4*q+3}], v10 offset:{s*128+16*q}")
        for d in range(4):
            unpack_lo(a, 144+2*d, XF+4*s+d); unpack_hi(a, 145+2*d, XF+4*s+d)
        for e in range(8): a(f"v_fma_f32 v{144+e}, v{144+e}, v9, v8")
        a("s_waitcnt lgkmcnt(0)")
        for e in range(8): a(f"v_fma_f32 v{144+e}, v{144+e}, v{CO+e}, v{CO+8+e}")
        for d in range(4): a(f"v_cvt_pk_bf16_f32 v{XF+4*s+d}, v{144+2*d}, v{145+2*d}")
    AQ, AK, AV = 160, 176, 192
    for r in range(32): a(f"v_mov_b32 v{AQ+r}, 0")
    a("v_cmp_eq_u32 vcc, 28, v3")
    a("v_mov_b32 v11, 0")
    a("v_mov_b32 v12, 1.0")
    a("v_cndmask_b32 v11, v11, v12, vcc")
    for r in range(16): a(f"v_mov_b32 v{AV+r}, v11")
    WF = 208
    a("v_lshlrev_b32 v6, 4, v1")
    for p in range(3): a(f"ds_read_b128 v[{WF+4*p}:{WF+4*p+3}], v6 offset:{p*1024}")
    a(f"v_add_u32 v7, {21*3072}, v6")
    for s in range(28):
        cur = WF + 12*(s & 1); nxt = WF + 12*((s+1) & 1)
        if s + 1 < 28:
            for p in range(3):
                off = ((s+1)*3+p)*1024
                if off < 65536: a(f"ds_read_b128 v[{nxt+4*p}:{nxt+4*p+3}], v6 offset:{off}")
                else: a(f"ds_read_b128 v[{nxt+4*p}:{nxt+4*p+3}], v7 offset:{off-21*3072}")
            a("s_waitcnt lgkmcnt(3)")
        else: a("s_waitcnt lgkmcnt(0)")
        x = XF + 4*s
        a(f"v_mfma_f32_32x32x16_bf16 v[{AQ}:{AQ+15}], v[{cur}:{cur+3}], v[{x}:{x+3}], v[{AQ}:{AQ+15}]")
        a(f"v_mfma_f32_32x32x16_bf16 v[{AK}:{AK+15}], v[{cur+4}:{cur+7}], v[{x}:{x+3}], v[{AK}:{AK+15}]")
        a(f"v_mfma_f32_32x32x16_bf16 v[{AV}:{AV+15}], v[{x}:{x+3}], v[{cur+8}:{cur+11}], v[{AV}:{AV+15}]")
    a.nop(12)
    for r in range(16): a(f"v_mul_f32 v{AQ+r}, {f2u(QSCALE)}, v{AQ+r}")
    for r in range(8):
        a(f"v_cvt_pk_bf16_f32 v{128+r}, v{AQ+2*r}, v{AQ+2*r+1}")
        a(f"v_cvt_pk_bf16_f32 v{136+r}, v{AK+2*r}, v{AK+2*r+1}")
        a(f"v_cvt_pk_bf16_f32 v{144+r}, v{AV+2*r}, v{AV+2*r+1}")
    a(f"s_lshl_b32 s44, s{sH}, 6")
    a(f"s_lshl_b32 s45, s{sMB}, 2")
    a("s_add_u32 s44, s44, s45")
    a("s_add_u32 s44, s44, s3")
    a("s_lshl_b32 s45, s44, 12")
    a(f"s_add_u32 s45, s45, {OFF_KV}")
    a("s_lshl_b32 s46, s44, 11")
    a(f"s_add_u32 s46, s46, {OFF_Q}")
    ws = f"s[{SRD_WS}:{SRD_WS+3}]"
    a(f"buffer_store_dwordx4 v[128:131], v6, {ws}, s46 offen")
    a(f"buffer_store_dwordx4 v[132:135], v6, {ws}, s46 offen offset:1024")
    a(f"buffer_store_dwordx4 v[136:139], v6, {ws}, s45 offen")
    a(f"buffer_store_dwordx4 v[140:143], v6, {ws}, s45 offen offset:1024")
    a(f"buffer_store_dwordx4 v[144:147], v6, {ws}, s45 offen offset:2048")
    a(f"buffer_store_dwordx4 v[148:151], v6, {ws}, s45 offen offset:3072")
    epilogue(a, n)
    return n, a, 256, 256, LDS_COEF + 4096

WS = f"s[{SRD_WS}:{SRD_WS+3}]"
def mfma(d, A, B, C=None):
    c = "0" if C == 0 else R(d if C is None else C, 16)
    return f"v_mfma_f32_32x32x16_bf16 {R(d,16)}, {R(A,4)}, {R(B,4)}, {c}"

def k_attn():
    a = Asm(); n = "attn_kernel"
    prologue(a, n, 256)
    sMB, sH = 60, 61
    map_mb_h(a, sMB, sH)
    QF, OA, S0, S1, P, KV = 16, 48, 112, 128, 144, 152
    sKV, sQ, sCNT = 62, 63, 64
    a("v_lshlrev_b32 v6, 4, v1")
    a(f"s_lshl_b32 s44, s{sH}, 6")
    a(f"s_lshl_b32 s45, s{sMB}, 2")
    a("s_add_u32 s44, s44, s45")
    a("s_lshl_b32 s44, s44, 11")
    a(f"s_add_u32 s{sQ}, s44, {OFF_Q}")
    for q in range(4):
        a(f"s_add_u32 s44, s{sQ}, {q*2048}")
        a(f"buffer_load_dwordx4 v[{QF+8*q}:{QF+8*q+3}], v6, {WS}, s44 offen")
        a(f"buffer_load_dwordx4 v[{QF+8*q+4}:{QF+8*q+7}], v6, {WS}, s44 offen offset:1024")
    a(f"s_lshl_b32 s44, s{sH}, 6")
    a("s_lshl_b32 s45, s3, 4")
    a("s_add_u32 s44, s44, s45")
    a("s_lshl_b32 s44, s44, 12")
    a(f"s_add_u32 s{sKV}, s44, {OFF_KV}")
    def kvload(buf, part):
        b = KV + 16*buf + 4*part
        return f"buffer_load_dwordx4 v[{b}:{b+3}], v6, {WS}, s{sKV} offen offset:{1024*part}"
    for t in range(3):
        for p in range(4): a(kvload(t, p))
        a(f"s_add_u32 s{sKV}, s{sKV}, 4096")
    for r in range(64): a(f"v_mov_b32 v{OA+r}, 0")
    for r in range(4): a(f"v_mov_b32 v{P+4+r}, 0")
    for r in range(4): a(f"v_mov_b32 v{KV+48+12+r}, 0")
    a("s_waitcnt vmcnt(8)")
    a(mfma(S0, KV+0, QF+0, 0))
    a(mfma(S0, KV+4, QF+4))
    a.nop(12)
    a(f"s_mov_b32 s{sCNT}, 4")
    a.raw(".p2align 6")
    a.label(f"{n}_loop")
    for tt in range(4):
        for q in range(4):
            Sc = S0 if (q & 1) == 0 else S1
            Sn = S1 if (q & 1) == 0 else S0
            if q < 3: kb, qn = KV + 16*tt, q + 1
            else: kb, qn = KV + 16*((tt+1) & 3), 0
            if q > 0: vb, qp = KV + 16*tt, q - 1
            else: vb, qp = KV + 16*((tt+3) & 3), 3
            extra = {0: [], 1: [], 2: [], 3: []}
            pre = []
            if q == 3: pre.append("s_waitcnt vmcnt(8)")
            if q == 0:
                extra[1].append(kvload((tt+3) & 3, 0)); extra[2].append(kvload((tt+3) & 3, 1)); extra[3].append(kvload((tt+3) & 3, 2))
            if q == 1:
                extra[0].append(kvload((tt+3) & 3, 3)); extra[1].append(f"s_add_u32 s{sKV}, s{sKV}, 4096")
            e = lambda k: f"v_exp_f32 v{Sc+k}, v{Sc+k}"
            c = lambda k: f"v_cvt_pk_bf16_f32 v{P+k}, v{Sc+2*k}, v{Sc+2*k+1}"
            for x in pre: a(x)
            a(mfma(Sn, kb, QF+8*qn, 0))
            for x in extra[0]: a(x)
            for k in (0,1,2,3): a(e(k))
            a(c(0)); a(c(1))
            a(mfma(OA+16*qp, vb+12, P+4))
            for x in extra[1]: a(x)
            for k in (4,5,6,7): a(e(k))
            a(c(2)); a(c(3))
            a(mfma(Sn, kb+4, QF+8*qn+4))
            for x in extra[2]: a(x)
            for k in (8,9,10,11): a(e(k))
            a(c(4)); a(c(5))
            a(mfma(OA+16*q, KV+16*tt+8, P))
            for x in extra[3]: a(x)
            for k in (12,13,14,15): a(e(k))
            a(c(6)); a(c(7))
    a(f"s_sub_u32 s{sCNT}, s{sCNT}, 1")
    a(f"s_cmp_lg_u32 s{sCNT}, 0")
    a(f"s_cbranch_scc1 {n}_loop")
    a("s_nop 1")
    a(mfma(OA+48, KV+48+12, P+4))
    a("s_waitcnt vmcnt(0)")
    a.nop(12)
    a("s_lshl_b32 s44, s3, 12")
    a("v_add_u32 v7, s44, v6")
    for q in range(4):
        for g in range(4):
            a(f"ds_write_b128 v7, v[{OA+16*q+4*g}:{OA+16*q+4*g+3}] offset:{q*16384+g*1024}")
    a("s_waitcnt lgkmcnt(0)")
    a("s_barrier")
    a("s_lshl_b32 s44, s3, 14")
    a("v_add_u32 v7, s44, v6")
    for w in range(4):
        for g in range(4):
            a(f"ds_read_b128 v[{OA+16*w+4*g}:{OA+16*w+4*g+3}], v7 offset:{w*4096+g*1024}")
    a("s_waitcnt lgkmcnt(0)")
    for r in range(16):
        a(f"v_add_f32 v{OA+r}, v{OA+r}, v{OA+16+r}")
        a(f"v_add_f32 v{OA+32+r}, v{OA+32+r}, v{OA+48+r}")
    for r in range(16): a(f"v_add_f32 v{OA+r}, v{OA+r}, v{OA+32+r}")
    a(f"v_mov_b32 v8, v{OA+12}")
    a(f"v_mov_b32 v9, v{OA+12}")
    a("s_nop 1")
    a("v_permlane32_swap_b32 v8, v9")
    a("s_nop 1")
    a(f"v_cmp_le_f32 vcc, {f2u(2.0**-80)}, v9")
    a(f"v_mov_b32 v10, {f2u(2.0**80)}")
    a("v_cmp_ge_f32 s[44:45], v10, v9")
    a("s_and_b64 vcc, vcc, s[44:45]")
    a("s_cmp_eq_u64 vcc, -1")
    a(f"s_cbranch_scc1 {n}_ok")
    a(f"s_lshl_b32 s44, s3, 11")
    a(f"s_add_u32 s44, s44, s{sQ}")
    a(f"buffer_load_dwordx4 v[{QF}:{QF+3}], v6, {WS}, s44 offen")
    a(f"buffer_load_dwordx4 v[{QF+4}:{QF+7}], v6, {WS}, s44 offen offset:1024")
    a(f"s_lshl_b32 s44, s{sH}, 18")
    a(f"s_add_u32 s{sKV}, s44, {OFF_KV}")
    for r in range(16): a(f"v_mov_b32 v{OA+r}, 0")
    a("v_mov_b32 v10, 0xff800000")
    a(f"s_mov_b32 s{sCNT}, 64")
    a.label(f"{n}_slow")
    for p in range(4): a(kvload(0, p))
    a(f"s_add_u32 s{sKV}, s{sKV}, 4096")
    a("s_waitcnt vmcnt(0)")
    a(mfma(S0, KV+0, QF+0, 0))
    a(mfma(S0, KV+4, QF+4))
    a.nop(13)
    a(f"v_max3_f32 v11, v{S0}, v{S0+1}, v{S0+2}")
    for k in range(3, 15, 2): a(f"v_max3_f32 v11, v11, v{S0+k}, v{S0+k+1}")
    a(f"v_max_f32 v11, v11, v{S0+15}")
    a("v_mov_b32 v12, v11")
    a("s_nop 1")
    a("v_permlane32_swap_b32 v11, v12")
    a("s_nop 1")
    a("v_max3_f32 v11, v11, v12, v10")
    a("v_sub_f32 v12, v10, v11")
    a("v_exp_f32 v12, v12")
    a("v_mov_b32 v10, v11")
    for r in range(16): a(f"v_mul_f32 v{OA+r}, v{OA+r}, v12")
    for r in range(16): a(f"v_sub_f32 v{S0+r}, v{S0+r}, v10")
    for r in range(16): a(f"v_exp_f32 v{S0+r}, v{S0+r}")
    a("s_nop 0")
    for k in range(8): a(f"v_cvt_pk_bf16_f32 v{P+k}, v{S0+2*k}, v{S0+2*k+1}")
    a("s_nop 1")
    a(mfma(OA, KV+8, P))
    a(mfma(OA, KV+12, P+4))
    a.nop(13)
    a(f"s_sub_u32 s{sCNT}, s{sCNT}, 1")
    a(f"s_cmp_lg_u32 s{sCNT}, 0")
    a(f"s_cbranch_scc1 {n}_slow")
    a(f"v_mov_b32 v8, v{OA+12}")
    a(f"v_mov_b32 v9, v{OA+12}")
    a("s_nop 1")
    a("v_permlane32_swap_b32 v8, v9")
    a("s_nop 1")
    a.label(f"{n}_ok")
    a("v_rcp_f32 v9, v9")
    a("s_nop 0")
    for r in range(16): a(f"v_mul_f32 v{OA+r}, v{OA+r}, v9")
    for r in range(8): a(f"v_cvt_pk_bf16_f32 v{P+r}, v{OA+2*r}, v{OA+2*r+1}")
    a(f"s_lshl_b32 s44, s{sMB}, 2")
    a("s_add_u32 s44, s44, s3")
    a("s_lshl_b32 s44, s44, 5")
    a(f"s_lshl_b32 s45, s{sH}, 1")
    a("s_add_u32 s44, s44, s45")
    a("s_lshl_b32 s44, s44, 10")
    a(f"s_add_u32 s44, s44, {OFF_O}")
    a(f"buffer_store_dwordx4 v[{P}:{P+3}], v6, {WS}, s44 offen")
    a(f"buffer_store_dwordx4 v[{P+4}:{P+7}], v6, {WS}, s44 offen offset:1024")
    epilogue(a, n)
    return n, a, 256, 256, 65536

def map_rb_nb(a, sRB, sNB):
    a("s_and_b32 s44, s2, 7")
    a("s_lshr_b32 s45, s2, 3")
    a("s_mul_hi_u32 s46, s45, 0x24924925")
    a("s_mul_i32 s47, s46, 7")
    a(f"s_sub_u32 s{sNB}, s45, s47")
    a("s_lshl_b32 s44, s44, 2")
    a(f"s_add_u32 s{sRB}, s44, s46")

def reduce4(a, ACC, vlane16, vtmp):
    a("s_lshl_b32 s44, s3, 12")
    a(f"v_add_u32 v{vtmp}, s44, v{vlane16}")
    for q in range(4):
        for g in range(4):
            a(f"ds_write_b128 v{vtmp}, v[{ACC+16*q+4*g}:{ACC+16*q+4*g+3}] offset:{q*16384+g*1024}")
    a("s_waitcnt lgkmcnt(0)")
    a("s_barrier")
    a("s_lshl_b32 s44, s3, 14")
    a(f"v_add_u32 v{vtmp}, s44, v{vlane16}")
    for w in range(4):
        for g in range(4):
            a(f"ds_read_b128 v[{ACC+16*w+4*g}:{ACC+16*w+4*g+3}], v{vtmp} offset:{w*4096+g*1024}")
    a("s_waitcnt lgkmcnt(0)")
    for r in range(16):
        a(f"v_add_f32 v{ACC+r}, v{ACC+r}, v{ACC+16+r}")
        a(f"v_add_f32 v{ACC+32+r}, v{ACC+32+r}, v{ACC+48+r}")
    for r in range(16): a(f"v_add_f32 v{ACC+r}, v{ACC+r}, v{ACC+32+r}")

def k_oproj():
    a = Asm(); n = "oproj_kernel"
    prologue(a, n, 224)
    sRB, sNB = 60, 61
    map_rb_nb(a, sRB, sNB)
    WA, OB, ACC = 16, 80, 144
    a("v_lshlrev_b32 v6, 4, v1")
    for t in range(2):
        a(f"s_lshl_b32 s44, s{sNB}, 1")
        a(f"s_add_u32 s44, s44, {t}")
        a("s_lshl_b32 s44, s44, 5")
        a("s_lshl_b32 s45, s3, 3")
        a("s_add_u32 s44, s44, s45")
        a("s_lshl_b32 s44, s44, 10")
        a(f"s_add_u32 s44, s44, {OFF_WO}")
        a("s_add_u32 s46, s44, 4096")
        for s in range(8):
            b = WA + 32*t + 4*s
            a(f"buffer_load_dwordx4 v[{b}:{b+3}], v6, {WS}, s{44 if s < 4 else 46} offen offset:{1024*(s&3)}")
        a(f"s_lshl_b32 s44, s{sRB}, 1")
        a(f"s_add_u32 s44, s44, {t}")
        a("s_lshl_b32 s44, s44, 5")
        a("s_add_u32 s44, s44, s45")
        a("s_lshl_b32 s44, s44, 10")
        a(f"s_add_u32 s44, s44, {OFF_O}")
        a("s_add_u32 s46, s44, 4096")
        for s in range(8):
            b = OB + 32*t + 4*s
            a(f"buffer_load_dwordx4 v[{b}:{b+3}], v6, {WS}, s{44 if s < 4 else 46} offen offset:{1024*(s&3)}")
    srd(a, SRD_A, sX, 2048*896)
    a("s_and_b32 s48, s3, 1")
    a("s_lshr_b32 s49, s3, 1")
    a(f"s_lshl_b32 s50, s{sNB}, 1")
    a("s_add_u32 s50, s50, s48")
    a(f"s_lshl_b32 s51, s{sRB}, 1")
    a("s_add_u32 s51, s51, s49")
    a("v_and_b32 v3, 31, v1")
    a("v_lshrrev_b32 v4, 5, v1")
    a("s_lshl_b32 s44, s51, 5")
    a("v_add_u32 v5, s44, v3")
    a("v_mul_u32_u24 v7, 896, v5")
    a("v_lshl_add_u32 v7, v4, 3, v7")
    a("s_lshl_b32 s44, s50, 6")
    a("v_add_u32 v7, s44, v7")
    XR, GA = 208, 216
    for g in range(4): a(f"buffer_load_dwordx2 v[{XR+2*g}:{XR+2*g+1}], v7, s[{SRD_A}:{SRD_A+3}], 0 offen offset:{16*g}")
    a("s_lshl_b32 s44, s50, 7")
    a(f"s_add_u32 s44, s44, {OFF_MOD + 2*448*4}")
    a("v_lshlrev_b32 v8, 4, v4")
    for g in range(4): a(f"buffer_load_dwordx4 v[{GA+4*g}:{GA+4*g+3}], v8, {WS}, s44 offen offset:{32*g}")
    a("s_waitcnt vmcnt(0)")
    for s in range(8):
        for tn in range(2):
            for tr in range(2):
                d = ACC + 16*(tn + 2*tr)
                a(mfma(d, WA+32*tn+4*s, OB+32*tr+4*s, 0 if s == 0 else None))
    a.nop(12)
    reduce4(a, ACC, 6, 9)
    for g in range(4):
        for d in range(2):
            unpack_lo(a, 10, XR+2*g+d); unpack_hi(a, 11, XR+2*g+d)
            r = 4*g + 2*d
            a(f"v_fma_f32 v{ACC+r}, v{ACC+r}, v{GA+r}, v10")
            a(f"v_fma_f32 v{ACC+r+1}, v{ACC+r+1}, v{GA+r+1}, v11")
    for r in range(8): a(f"v_cvt_pk_bf16_f32 v{WA+r}, v{ACC+2*r}, v{ACC+2*r+1}")
    a("s_mul_i32 s44, s51, 28")
    a("s_lshl_b32 s45, s50, 1")
    a("s_add_u32 s44, s44, s45")
    a("s_lshl_b32 s44, s44, 10")
    a(f"s_add_u32 s44, s44, {OFF_X1}")
    a(f"buffer_store_dwordx4 v[{WA}:{WA+3}], v6, {WS}, s44 offen")
    a(f"buffer_store_dwordx4 v[{WA+4}:{WA+7}], v6, {WS}, s44 offen offset:1024")
    for r in range(8):
        unpack_lo(a, ACC+2*r, WA+r); unpack_hi(a, ACC+2*r+1, WA+r)
    a(f"v_add_f32 v10, v{ACC}, v{ACC+1}")
    for r in range(2, 16): a(f"v_add_f32 v10, v10, v{ACC+r}")
    a("v_mov_b32 v11, v10")
    a("s_nop 1")
    a("v_permlane32_swap_b32 v10, v11")
    a("s_nop 1")
    a("v_add_f32 v10, v10, v11")
    a(f"v_mul_f32 v10, {f2u(1/32)}, v10")
    a("v_mov_b32 v11, 0")
    for r in range(16):
        a(f"v_sub_f32 v12, v{ACC+r}, v10")
        a("v_fmac_f32 v11, v12, v12")
    a("v_mov_b32 v12, v11")
    a("s_nop 1")
    a("v_permlane32_swap_b32 v11, v12")
    a("s_nop 1")
    a("v_add_f32 v11, v11, v12")
    a("s_cmp_ge_u32 s50, 7")
    a("s_cselect_b32 s44, 8, 0")
    a("s_lshl_b32 s45, s50, 3")
    a("s_add_u32 s44, s44, s45")
    a(f"s_add_u32 s44, s44, {OFF_STATS}")
    a("v_lshlrev_b32 v12, 7, v5")
    a(f"v_mov_b32 v13, {OOB}")
    a("v_cmp_eq_u32 vcc, 0, v4")
    a("s_nop 1")
    a("v_cndmask_b32 v12, v13, v12, vcc")
    a(f"buffer_store_dwordx2 v[10:11], v12, {WS}, s44 offen")
    epilogue(a, n)
    return n, a, 224, 256, 65536

def map_mb_fb(a, sMB, sFB):
    a("s_and_b32 s44, s2, 7")
    a("s_lshr_b32 s45, s2, 3")
    a("s_lshr_b32 s46, s44, 1")
    a("s_lshl_b32 s46, s46, 2")
    a("s_lshr_b32 s47, s45, 3")
    a(f"s_add_u32 s{sMB}, s46, s47")
    a("s_and_b32 s46, s44, 1")
    a("s_lshl_b32 s46, s46, 3")
    a("s_and_b32 s47, s45, 7")
    a(f"s_add_u32 s{sFB}, s46, s47")

GELU_C1 = -2 * LOG2E * math.sqrt(2 / math.pi)
GELU_C3 = GELU_C1 * 0.044715
def k_gateup():
    a = Asm(); n = "gateup_kernel"
    prologue(a, n, 256)
    sMB, sFB = 60, 61
    map_mb_fb(a, sMB, sFB)
    XF = 16
    a("v_lshlrev_b32 v6, 4, v1")
    a("v_and_b32 v3, 31, v1")
    a("v_lshrrev_b32 v4, 5, v1")
    a(f"s_lshl_b32 s48, s{sMB}, 2")
    a("s_add_u32 s48, s48, s3")
    a("s_mul_i32 s44, s48, 28672")
    a(f"s_add_u32 s44, s44, {OFF_X1}")
    for s in range(28):
        a(f"buffer_load_dwordx4 v[{XF+4*s}:{XF+4*s+3}], v6, {WS}, s44 offen offset:{1024*(s&3)}")
        if (s & 3) == 3: a("s_add_u32 s44, s44, 4096")
    a("s_lshl_b32 s44, s48, 5")
    a("v_add_u32 v5, s44, v3")
    a("v_lshlrev_b32 v7, 7, v5")
    a("v_lshl_add_u32 v7, v4, 6, v7")
    a(f"s_mov_b32 s44, {OFF_STATS}")
    ST = 128
    for q in range(4): a(f"buffer_load_dwordx4 v[{ST+4*q}:{ST+4*q+3}], v7, {WS}, s44 offen offset:{16*q}")
    sWG_ = 62
    a(f"s_mul_i32 s{sWG_}, s{sFB}, {7*28672}")
    a(f"s_add_u32 s{sWG_}, s{sWG_}, {OFF_WGU}")
    def dma_tile(t, slot):
        a("s_lshl_b32 s45, s3, 10")
        a(f"s_add_u32 s44, s{sWG_}, {t*28672}")
        a("s_add_u32 s44, s44, s45")
        a(f"s_add_u32 m0, s45, {slot*28672}")
        for i in range(7):
            a("s_nop 0")
            a(f"buffer_load_dwordx4 v6, {WS}, s44 offen lds")
            if i < 6:
                a("s_add_u32 s44, s44, 4096")
                a("s_add_u32 m0, m0, 4096")
    for t in range(5): dma_tile(t, t)
    LCSB = 5*28672
    a(f"s_mul_i32 s44, s{sFB}, {7*256}")
    a(f"s_add_u32 s44, s44, {OFF_CSB}")
    a("v_lshlrev_b32 v8, 2, v0")
    a(f"buffer_load_dword v9, v8, {WS}, s44 offen")
    a(f"v_mov_b32 v10, {OOB}")
    a("v_add_u32 v11, 1024, v8")
    a("v_cmp_gt_u32 vcc, 192, v0")
    a("s_nop 1")
    a("v_cndmask_b32 v11, v10, v11, vcc")
    a(f"buffer_load_dword v12, v11, {WS}, s44 offen")
    a("s_waitcnt vmcnt(0)")
    a(f"v_add_u32 v8, {LCSB}, v8")
    a("ds_write_b32 v8, v9")
    a("ds_write_b32 v8, v12 offset:1024")
    a(f"v_add_f32 v8, v{ST}, v{ST+2}")
    for i in range(2, 7): a(f"v_add_f32 v8, v8, v{ST+2*i}")
    a("v_mov_b32 v9, v8")
    a("s_nop 1")
    a("v_permlane32_swap_b32 v8, v9")
    a("s_nop 1")
    a("v_add_f32 v8, v8, v9")
    a(f"v_mul_f32 v8, {f2u(1/14)}, v8")
    a("v_mov_b32 v9, 0"); a("v_mov_b32 v10, 0")
    for i in range(7):
        a(f"v_sub_f32 v11, v{ST+2*i}, v8")
        a("v_fmac_f32 v9, v11, v11")
        a(f"v_add_f32 v10, v10, v{ST+2*i+1}")
    a(f"v_fmac_f32 v10, {f2u(32.0)}, v9")
    a("v_mov_b32 v11, v10")
    a("s_nop 1")
    a("v_permlane32_swap_b32 v10, v11")
    a("s_nop 1")
    a("v_add_f32 v10, v10, v11")
    a(f"v_mul_f32 v10, {f2u(1/448)}, v10")
    a(f"v_add_f32 v10, {f2u(1e-5)}, v10")
    a("v_rsq_f32 v9, v10")
    a("s_waitcnt lgkmcnt(0)")
    a("s_barrier")
    ACC, WF, CB, T = 144, 160, 176, 208
    a(f"v_lshlrev_b32 v10, 4, v4")
    a(f"v_add_u32 v10, {LCSB}, v10")
    a("s_mul_i32 s50, s48, 112")
    a(f"s_mul_i32 s51, s{sFB}, 7")
    a("s_add_u32 s50, s50, s51")
    a("s_lshl_b32 s50, s50, 10")
    a(f"s_add_u32 s50, s50, {OFF_ACT}")
    a(f"s_mov_b32 s52, {f2u(GELU_C3)}")
    a(f"s_mov_b32 s53, {f2u(GELU_C1)}")
    for t in range(7):
        slot = t if t < 5 else t - 5
        if t == 5:
            a("s_waitcnt vmcnt(0)")
            a("s_barrier")
        base = slot*28672
        vb = 11
        a(f"v_add_u32 v{vb}, {base}, v6")
        for s in range(min(3, 28)): a(f"ds_read_b128 v[{WF+4*s}:{WF+4*s+3}], v{vb} offset:{s*1024}")
        for s in range(28):
            if s + 3 < 28:
                b = WF + 4*((s+3) & 3)
                a(f"ds_read_b128 v[{b}:{b+3}], v{vb} offset:{(s+3)*1024}")
                a("s_waitcnt lgkmcnt(3)")
            else:
                a(f"s_waitcnt lgkmcnt({27-s})")
            a(mfma(ACC, WF+4*(s & 3), XF+4*s, 0 if s == 0 else None))
        if t in (0, 1):
            a("s_barrier")
            dma_tile(5+t, t)
        for q in range(4):
            a(f"ds_read_b128 v[{CB+4*q}:{CB+4*q+3}], v10 offset:{t*256+q*32}")
            a(f"ds_read_b128 v[{CB+16+4*q}:{CB+16+4*q+3}], v10 offset:{t*256+128+q*32}")
        a("s_waitcnt lgkmcnt(0)")
        a.nop(10)
        for r in range(16):
            a(f"v_fma_f32 v{ACC+r}, -v8, v{CB+r}, v{ACC+r}")
            a(f"v_fma_f32 v{ACC+r}, v{ACC+r}, v9, v{CB+16+r}")
        for r in range(8):
            g, u = ACC+r, ACC+8+r
            a(f"v_mul_f32 v{T+r}, v{g}, v{g}")
            a(f"v_mul_f32 v{T+r}, s52, v{T+r}")
            a(f"v_add_f32 v{T+r}, s53, v{T+r}")
            a(f"v_mul_f32 v{T+r}, v{T+r}, v{g}")
        for r in range(8): a(f"v_exp_f32 v{T+r}, v{T+r}")
        for r in range(8): a(f"v_add_f32 v{T+r}, 1.0, v{T+r}")
        for r in range(8): a(f"v_rcp_f32 v{T+r}, v{T+r}")
        for r in range(8): a(f"v_mul_f32 v{ACC+r}, v{ACC+r}, v{ACC+8+r}")
        for r in range(8): a(f"v_mul_f32 v{ACC+r}, v{ACC+r}, v{T+r}")
        for r in range(4): a(f"v_cvt_pk_bf16_f32 v{T+8+r}, v{ACC+2*r}, v{ACC+2*r+1}")
        a(f"buffer_store_dwordx4 v[{T+8}:{T+11}], v6, {WS}, s50 offen")
        a("s_add_u32 s50, s50, 1024")
    epilogue(a, n)
    return n, a, 256, 256, LCSB + 2048

def k_down():
    a = Asm(); n = "down_kernel"
    prologue(a, n, 224)
    sRB, sNB = 60, 61
    map_rb_nb(a, sRB, sNB)
    ACC = 16
    WA = 256
    AB = 80
    a("v_lshlrev_b32 v6, 4, v1")
    for t in range(2):
        a(f"s_lshl_b32 s44, s{sNB}, 1")
        a(f"s_add_u32 s44, s44, {t}")
        a("s_mul_i32 s44, s44, 112")
        a("s_mul_i32 s45, s3, 28")
        a("s_add_u32 s44, s44, s45")
        a("s_lshl_b32 s44, s44, 10")
        a(f"s_add_u32 s44, s44, {OFF_WD}")
        for s in range(28):
            b = WA + 112*t + 4*s
            a(f"buffer_load_dwordx4 {R(b,4)}, v6, {WS}, s44 offen offset:{1024*(s&3)}")
            if (s & 3) == 3: a("s_add_u32 s44, s44, 4096")
    sA0, sA1 = 62, 63
    for t in range(2):
        a(f"s_lshl_b32 s44, s{sRB}, 1")
        a(f"s_add_u32 s44, s44, {t}")
        a("s_mul_i32 s44, s44, 112")
        a("s_mul_i32 s45, s3, 28")
        a("s_add_u32 s44, s44, s45")
        a("s_lshl_b32 s44, s44, 10")
        a(f"s_add_u32 s{sA0+t}, s44, {OFF_ACT}")
    def actload(s):
        out = []
        for t in range(2):
            b = AB + 8*(s & 7) + 4*t
            out.append(f"buffer_load_dwordx4 v[{b}:{b+3}], v6, {WS}, s{sA0+t} offen offset:{1024*(s&3)}")
        if (s & 3) == 3:
            out.append(f"s_add_u32 s{sA0}, s{sA0}, 4096"); out.append(f"s_add_u32 s{sA1}, s{sA1}, 4096")
        return out
    a("s_waitcnt vmcnt(0)")
    for s in range(6):
        for x in actload(s): a(x)
    for s in range(28):
        if s + 6 < 28:
            for x in actload(s+6): a(x)
            a("s_waitcnt vmcnt(12)")
        else: a(f"s_waitcnt vmcnt({2*(27-s)})")
        for tn in range(2):
            for tr in range(2):
                a(mfma(ACC + 16*(tn+2*tr), WA+112*tn+4*s, AB+8*(s & 7)+4*tr, 0 if s == 0 else None))
    a("s_and_b32 s48, s3, 1")
    a("s_lshr_b32 s49, s3, 1")
    a(f"s_lshl_b32 s50, s{sNB}, 1")
    a("s_add_u32 s50, s50, s48")
    a(f"s_lshl_b32 s51, s{sRB}, 1")
    a("s_add_u32 s51, s51, s49")
    a("s_mul_i32 s44, s51, 28")
    a("s_lshl_b32 s45, s50, 1")
    a("s_add_u32 s44, s44, s45")
    a("s_lshl_b32 s44, s44, 10")
    a(f"s_add_u32 s44, s44, {OFF_X1}")
    XR, GB = 160, 176
    a(f"buffer_load_dwordx4 v[{XR}:{XR+3}], v6, {WS}, s44 offen")
    a(f"buffer_load_dwordx4 v[{XR+4}:{XR+7}], v6, {WS}, s44 offen offset:1024")
    a("v_lshrrev_b32 v4, 5, v1")
    a("s_lshl_b32 s44, s50, 7")
    a(f"s_add_u32 s44, s44, {OFF_MOD + 5*448*4}")
    a("v_lshlrev_b32 v8, 4, v4")
    for g in range(4): a(f"buffer_load_dwordx4 v[{GB+4*g}:{GB+4*g+3}], v8, {WS}, s44 offen offset:{32*g}")
    a.nop(12)
    reduce4(a, ACC, 6, 9)
    a("s_waitcnt vmcnt(0)")
    for r in range(8):
        unpack_lo(a, 10, XR+r); unpack_hi(a, 11, XR+r)
        a(f"v_fma_f32 v{ACC+2*r}, v{ACC+2*r}, v{GB+2*r}, v10")
        a(f"v_fma_f32 v{ACC+2*r+1}, v{ACC+2*r+1}, v{GB+2*r+1}, v11")
    for r in range(8): a(f"v_cvt_pk_bf16_f32 v{AB+r}, v{ACC+2*r}, v{ACC+2*r+1}")
    srd(a, SRD_A, sOUT, 2048*896)
    a("v_and_b32 v3, 31, v1")
    a("s_lshl_b32 s44, s51, 5")
    a("v_add_u32 v5, s44, v3")
    a("v_mul_u32_u24 v7, 896, v5")
    a("v_lshl_add_u32 v7, v4, 3, v7")
    a("s_lshl_b32 s44, s50, 6")
    a("v_add_u32 v7, s44, v7")
    for g in range(4): a(f"buffer_store_dwordx2 v[{AB+2*g}:{AB+2*g+1}], v7, s[{SRD_A}:{SRD_A+3}], 0 offen offset:{16*g}")
    epilogue(a, n)
    return n, a, 224, 256, 65536

def build(kernels):
    hdr = ["; generated by gen1.py (hand-written generator)"]
    for n, a, g, b, lds in kernels:
        hdr.append(f"; @launch kernel={n} grid=({g},1,1) block=({b},1,1) lds={lds}")
    out = "\n".join(hdr) + '\n.amdgcn_target "amdgcn-amd-amdhsa--gfx950"\n.text\n'
    seen = set()
    for n, a, g, b, lds in kernels:
        if n in seen: continue
        seen.add(n)
        print(n, len(a.lines), "lines; hazards:", len(check_hazards(a.lines)))
        out += a.text()
    out += '.section .rodata,"a"\n'
    for n in dict.fromkeys(k[0] for k in kernels):
        out += ".p2align 6\n" + descriptor(n)
    return out

if __name__ == "__main__":
    ks = [k_prep(), k_fold(), k_qkv(), k_attn(), k_oproj(), k_gateup(), k_down()]
    open(sys.argv[1] if len(sys.argv) > 1 else "v1.s", "w").write(build(ks))
```
